```python
import torch

def _softmax(x, axis=-1):
    return torch.softmax(x, dim=axis)
def _gelu(x):
    return torch.nn.functional.gelu(x, approximate="tanh")
def _silu(x):
    return torch.nn.functional.silu(x)
def _sigmoid(x):
    return torch.sigmoid(x)
def _layernorm(x, axis=-1, eps=1e-5):
    m = x.mean(dim=axis, keepdim=True)
    v = x.var(dim=axis, keepdim=True, unbiased=False)
    return (x - m) / torch.sqrt(v + eps)
def _scatter_add(tgt, idx, src, axis=0):
    return tgt.clone().index_add_(axis, idx, src)
def _segment_sum(src, seg, n):
    out = torch.zeros((n,) + src.shape[1:], dtype=src.dtype)
    return out.index_add_(0, seg, src)
def _pad(x, pw):
    flat = tuple(v for pair in reversed(pw) for v in pair)
    return torch.nn.functional.pad(x, flat)

kernel_name = 'interleave_layers__linear_attn_block__sliding_block__prompt'

def setup_inputs():

    _w = (lambda a: (lambda t: t.to(torch.bfloat16) if t.is_floating_point() else t)(torch.as_tensor(a)))
    def _A_setup():
        B, S, D = 1, 2048, 1024
        return {
            "x": _w((lambda *s: torch.randn(*s, dtype=torch.bfloat16) * 0.05)(B, S, D)),
            "wqkv": _w((lambda *s: torch.randn(*s, dtype=torch.bfloat16) * 0.05)(D, 3 * D)),
            "wo": _w((lambda *s: torch.randn(*s, dtype=torch.bfloat16) * 0.05)(D, D)),
        }
    _A_in = _A_setup()

    def _B_setup():
        B, S, D = 1, 2048, 1024
        return {
            "x": _w((lambda *s: torch.randn(*s, dtype=torch.bfloat16) * 0.05)(B, S, D)),
            "wqkv": _w((lambda *s: torch.randn(*s, dtype=torch.bfloat16) * 0.05)(D, 3 * D)),
            "wo": _w((lambda *s: torch.randn(*s, dtype=torch.bfloat16) * 0.05)(D, D)),
        }
    _B_in = _B_setup()

    return {
        "A_x": _A_in["x"],
        "A_wqkv": _A_in["wqkv"],
        "A_wo": _A_in["wo"],
        "B_x": _B_in["x"],
        "B_wqkv": _B_in["wqkv"],
        "B_wo": _B_in["wo"],
    }

def reference(A_x, A_wqkv, A_wo, B_x, B_wqkv, B_wo):
    def _A_ref(x, wqkv, wo):
        B, S, D = x.shape
        H = 32; Dh = D // H
        qkv = (lambda x, *d: x.permute(*d))((x @ wqkv).reshape(B, S, 3, H, Dh), 2, 0, 3, 1, 4)
        q, k, v = qkv[0], qkv[1], qkv[2]
        phi = lambda t: torch.where(t > 0, t + 1, torch.exp(t)) + 1e-6
        pq, pk = phi(q), phi(k)
        kv = torch.einsum("bhsd,bhse->bhde", pk, v)
        z = torch.einsum("bhsd->bhd", pk)
        num = torch.einsum("bhqd,bhde->bhqe", pq, kv)
        den = torch.einsum("bhqd,bhd->bhq", pq, z)[..., None] + 1e-6
        o = num / den
        return (lambda x, *d: x.permute(*d))(o, 0, 2, 1, 3).reshape(B, S, D) @ wo

    def _B_ref(x, wqkv, wo):
        B, S, D = x.shape
        H = 32; Dh = D // H; W = 256
        qkv = (lambda x, *d: x.permute(*d))((x @ wqkv).reshape(B, S, 3, H, Dh), 2, 0, 3, 1, 4)
        q, k, v = qkv[0], qkv[1], qkv[2]
        scores = torch.einsum("bhqd,bhkd->bhqk", q, k) * (Dh ** -0.5)
        idx = torch.arange(S)
        mask = (idx[:, None] - idx[None, :] >= 0) & (idx[:, None] - idx[None, :] < W)
        scores = torch.where(mask[None, None], scores, -1e9)
        p = _softmax(scores, axis=-1)
        o = torch.einsum("bhqk,bhkd->bhqd", p, v)
        return (lambda x, *d: x.permute(*d))(o, 0, 2, 1, 3).reshape(B, S, D) @ wo

    x = A_x
    x = x + _A_ref(_layernorm(x, axis=-1), A_wqkv, A_wo)
    x = x + _B_ref(_layernorm(x, axis=-1), B_wqkv, B_wo)
    x = x + _A_ref(_layernorm(x, axis=-1), A_wqkv, A_wo)
    x = x + _B_ref(_layernorm(x, axis=-1), B_wqkv, B_wo)
    return x
```

```python
from gen import *

NEG = 0xf149f2ca

def gen_attn_b(name):
    k = K(name, 512)
    guard(k, 512)
    load_ptr(k, 4, ("ws", WS_Q))
    load_ptr(k, 6, ("ws", WS_K))
    load_ptr(k, 16, ("ws", WS_V))
    load_ptr(k, 18, ("ws", WS_O))
    k.e("s_lshr_b32 s8, s2, 4")
    k.e("s_and_b32 s9, s2, 15")
    k.e("v_lshrrev_b32 v1, 6, v0")
    k.e("s_nop 0")
    k.e("v_readfirstlane_b32 s10, v1")
    k.e("s_lshl_b32 s11, s9, 2")
    k.e("s_add_u32 s11, s11, s10")
    k.e("s_lshl_b32 s12, s11, 5")
    k.e("v_and_b32 v2, 63, v0")
    k.e("v_and_b32 v3, 31, v2")
    k.e("v_lshrrev_b32 v4, 5, v2")
    k.e("s_lshl_b32 s13, s8, 11")
    k.e("v_add_u32 v5, s13, v3")
    k.e("v_lshlrev_b32 v5, 6, v5")
    k.e("v_lshl_add_u32 v5, v4, 4, v5")
    k.e("s_lshl_b32 s14, s12, 6")
    k.e("v_add_u32 v6, s14, v5")
    k.e("global_load_dwordx4 v[8:11], v6, s[4:5]")
    k.e("global_load_dwordx4 v[12:15], v6, s[4:5] offset:32")
    k.e("s_lshl_b32 s15, s8, 5")
    k.e("v_add_u32 v7, s15, v3")
    k.e("v_lshlrev_b32 v7, 12, v7")
    k.e("v_lshl_add_u32 v7, v4, 3, v7")
    for b in range(9):
        k.e(f"s_add_u32 s20, s11, {b}")
        k.e("s_cmp_lt_u32 s20, 8")
        k.e(f"s_cbranch_scc1 L_{name}_kskip{b}")
        k.e(f"s_add_u32 s21, s14, {(32*b - 256)*64}")
        k.e("v_add_u32 v1, s21, v5")
        k.e(f"global_load_dwordx4 v[{176+8*b}:{179+8*b}], v1, s[6:7]")
        k.e(f"global_load_dwordx4 v[{180+8*b}:{183+8*b}], v1, s[6:7] offset:32")
        k.lab(f"L_{name}_kskip{b}")
    k.e("s_waitcnt vmcnt(0)")
    for b in range(9):
        c = 32 + 16 * b
        k.e(f"s_add_u32 s20, s11, {b}")
        k.e("s_cmp_lt_u32 s20, 8")
        k.e(f"s_cbranch_scc1 L_{name}_sinv{b}")
        k.e(f"v_mfma_f32_32x32x16_bf16 v[{c}:{c+15}], v[{176+8*b}:{179+8*b}], v[8:11], 0")
        k.e(f"v_mfma_f32_32x32x16_bf16 v[{c}:{c+15}], v[{180+8*b}:{183+8*b}], v[12:15], v[{c}:{c+15}]")
        k.e(f"s_branch L_{name}_sdone{b}")
        k.lab(f"L_{name}_sinv{b}")
        for r in range(16):
            k.e(f"v_mov_b32 v{c+r}, {NEG}")
        k.lab(f"L_{name}_sdone{b}")
    k.e("s_nop 15")
    k.e("s_nop 3")
    k.e("v_lshlrev_b32 v1, 2, v4")
    k.e(f"v_mov_b32 v16, {NEG}")
    for r in range(16):
        cst = 8 * (r // 4) + (r % 4)
        k.e(f"v_add_u32 v17, {cst}, v1")
        k.e("v_cmp_gt_u32 vcc, v17, v3")
        k.e("s_nop 1")
        k.e(f"v_cndmask_b32 v{32+r}, v16, v{32+r}, vcc")
        k.e("v_cmp_le_u32 vcc, v17, v3")
        k.e("s_nop 1")
        k.e(f"v_cndmask_b32 v{160+r}, v16, v{160+r}, vcc")
    k.e("v_max3_f32 v16, v32, v33, v34")
    for r in range(35, 175, 2):
        k.e(f"v_max3_f32 v16, v16, v{r}, v{r+1}")
    k.e("v_max_f32 v16, v16, v175")
    k.e("v_lshlrev_b32 v1, 2, v2")
    k.e("v_xor_b32 v1, 128, v1")
    k.e("ds_bpermute_b32 v17, v1, v16")
    k.e("s_waitcnt lgkmcnt(0)")
    k.e("v_max_f32 v16, v16, v17")
    k.e("s_mov_b32 s22, 0x3e829448")
    k.e("v_mul_f32 v16, s22, v16")
    k.e("v_sub_f32 v16, 0, v16")
    k.e("v_mov_b32 v17, 0")
    for r in range(32, 176):
        k.e(f"v_fma_f32 v{r}, v{r}, s22, v16")
        k.e(f"v_exp_f32 v{r}, v{r}")
    k.e("s_nop 0")
    for r in range(32, 176):
        k.e(f"v_add_f32 v17, v17, v{r}")
    k.e("ds_bpermute_b32 v18, v1, v17")
    for b in range(9):
        for q in range(8):
            k.e(f"v_cvt_pk_bf16_f32 v{32+16*b+q}, v{32+16*b+2*q}, v{32+16*b+2*q+1}")
    k.e("s_waitcnt lgkmcnt(0)")
    k.e("v_add_f32 v17, v17, v18")
    k.e("v_rcp_f32 v17, v17")
    for r in range(16):
        k.e(f"v_mov_b32 v{16+16*0+r+0}, 0") if False else None
    for b in range(9):
        k.e(f"s_add_u32 s20, s11, {b}")
        k.e("s_cmp_lt_u32 s20, 8")
        k.e(f"s_cbranch_scc1 L_{name}_vskip{b}")
        k.e(f"s_lshl_b32 s21, s12, 1")
        k.e(f"s_add_u32 s21, s21, {(32*b - 256)*2}")
        k.e("v_add_u32 v1, s21, v7")
        for j in range(2):
            R = 176 + 8 * b + 4 * j
            k.e(f"global_load_dwordx2 v[{R}:{R+1}], v1, s[16:17] offset:{32*j}")
            k.e(f"global_load_dwordx2 v[{R+2}:{R+3}], v1, s[16:17] offset:{32*j+16}")
        k.lab(f"L_{name}_vskip{b}")
    k.e("v_mov_b32 v6, v17")
    for r in range(16, 32):
        k.e(f"v_mov_b32 v{r}, 0")
    k.e("s_waitcnt vmcnt(0)")
    for b in range(9):
        k.e(f"s_add_u32 s20, s11, {b}")
        k.e("s_cmp_lt_u32 s20, 8")
        k.e(f"s_cbranch_scc1 L_{name}_pskip{b}")
        for j in range(2):
            R = 176 + 8 * b + 4 * j
            P = 32 + 16 * b + 4 * j
            k.e(f"v_mfma_f32_32x32x16_bf16 v[16:31], v[{R}:{R+3}], v[{P}:{P+3}], v[16:31]")
        k.lab(f"L_{name}_pskip{b}")
    k.e("s_nop 15")
    k.e("s_nop 3")
    for r in range(16, 32):
        k.e(f"v_mul_f32 v{r}, v{r}, v6")
    for q in range(8):
        k.e(f"v_cvt_pk_bf16_f32 v{32+q}, v{16+2*q}, v{17+2*q}")
    k.e("v_add_u32 v1, s12, v3")
    k.e("v_lshlrev_b32 v1, 11, v1")
    k.e("s_lshl_b32 s21, s8, 6")
    k.e("v_add_u32 v1, s21, v1")
    k.e("v_lshl_add_u32 v1, v4, 3, v1")
    for g in range(4):
        k.e(f"global_store_dwordx2 v1, v[{32+2*g}:{33+2*g}], s[18:19] offset:{16*g}")
    end(k)
    return k

def gen_attn_a(name):
    PREG, ZREG, KVB, ZF = 0, 16384, 17408, 19456
    k = K(name, 256, lds=19456 + 128)
    guard(k, 256)
    load_ptr(k, 4, ("ws", WS_Q))
    load_ptr(k, 6, ("ws", WS_K))
    load_ptr(k, 16, ("ws", WS_V))
    load_ptr(k, 18, ("ws", WS_O))
    k.e("s_lshr_b32 s8, s2, 3")
    k.e("s_and_b32 s9, s2, 7")
    k.e("v_lshrrev_b32 v1, 6, v0")
    k.e("v_and_b32 v2, 63, v0")
    k.e("v_and_b32 v3, 31, v2")
    k.e("v_lshrrev_b32 v4, 5, v2")
    k.e("s_lshl_b32 s10, s8, 5")
    k.e("v_add_u32 v5, s10, v3")
    k.e("v_lshlrev_b32 v5, 12, v5")
    k.e("v_lshl_add_u32 v5, v1, 10, v5")
    k.e("v_lshl_add_u32 v5, v4, 4, v5")
    for r in range(16, 32):
        k.e(f"v_mov_b32 v{r}, 0")
    k.e("v_mov_b32 v6, 0")
    for batch in range(4):
        for t in range(8):
            off = (batch * 8 + t) * 32
            k.e(f"global_load_dwordx4 v[{32+8*t}:{35+8*t}], v5, s[6:7] offset:{off}")
            k.e(f"global_load_dwordx4 v[{36+8*t}:{39+8*t}], v5, s[16:17] offset:{off}")
        k.e("s_waitcnt vmcnt(0)")
        for t in range(8):
            k.e(f"v_mfma_f32_32x32x16_bf16 v[16:31], v[{32+8*t}:{35+8*t}], v[{36+8*t}:{39+8*t}], v[16:31]")
            for d in range(4):
                R = 32 + 8 * t + d
                k.e(f"v_lshlrev_b32 v7, 16, v{R}")
                k.e(f"v_and_b32 v8, 0xffff0000, v{R}")
                k.e("v_add_f32 v6, v6, v7")
                k.e("v_add_f32 v6, v6, v8")
    k.e("s_nop 15")
    k.e("s_nop 3")
    k.e("v_lshlrev_b32 v7, 12, v1")
    k.e("v_lshl_add_u32 v7, v2, 6, v7")
    for q in range(4):
        k.e(f"ds_write_b128 v7, v[{16+4*q}:{19+4*q}] offset:{PREG + 16*q}")
    k.e("v_lshlrev_b32 v8, 8, v1")
    k.e("v_lshl_add_u32 v8, v2, 2, v8")
    k.e(f"ds_write_b32 v8, v6 offset:{ZREG}")
    k.e("s_waitcnt lgkmcnt(0)")
    k.e("s_barrier")
    k.e("v_lshlrev_b32 v7, 4, v0")
    for w in range(4):
        k.e(f"ds_read_b128 v[{32+4*w}:{35+4*w}], v7 offset:{PREG + 4096*w}")
    k.e("s_waitcnt lgkmcnt(0)")
    for i in range(4):
        k.e(f"v_add_f32 v{32+i}, v{32+i}, v{36+i}")
        k.e(f"v_add_f32 v{40+i}, v{40+i}, v{44+i}")
        k.e(f"v_add_f32 v{32+i}, v{32+i}, v{40+i}")
    k.e("v_cvt_pk_bf16_f32 v36, v32, v33")
    k.e("v_cvt_pk_bf16_f32 v37, v34, v35")
    k.e("v_lshrrev_b32 v8, 2, v0")
    k.e("v_and_b32 v9, 31, v8")
    k.e("v_lshrrev_b32 v8, 5, v8")
    k.e("v_and_b32 v10, 3, v0")
    k.e("v_lshlrev_b32 v9, 6, v9")
    k.e("v_lshl_add_u32 v9, v10, 4, v9")
    k.e("v_lshl_add_u32 v9, v8, 3, v9")
    k.e(f"ds_write_b64 v9, v[36:37] offset:{KVB}")
    k.e("v_lshlrev_b32 v7, 2, v0")
    for w in range(4):
        k.e(f"ds_read_b32 v{40+2*w}, v7 offset:{ZREG + 256*w}")
        k.e(f"ds_read_b32 v{41+2*w}, v7 offset:{ZREG + 256*w + 128}")
    k.e("s_waitcnt lgkmcnt(0)")
    for i in range(41, 48):
        k.e(f"v_add_f32 v40, v40, v{i}")
    k.e("v_cmp_gt_u32 vcc, 32, v0")
    k.e("s_and_saveexec_b64 s[22:23], vcc")
    k.e(f"ds_write_b32 v7, v40 offset:{ZF}")
    k.e("s_mov_b64 exec, s[22:23]")
    k.e("s_waitcnt lgkmcnt(0)")
    k.e("s_barrier")
    k.e("v_lshlrev_b32 v7, 6, v3")
    k.e("v_lshl_add_u32 v7, v4, 4, v7")
    k.e(f"ds_read_b128 v[32:35], v7 offset:{KVB}")
    k.e(f"ds_read_b128 v[36:39], v7 offset:{KVB + 32}")
    k.e("v_lshlrev_b32 v7, 5, v4")
    for q in range(2):
        k.e(f"ds_read_b128 v[{40+8*q}:{43+8*q}], v7 offset:{ZF + 64*q}")
        k.e(f"ds_read_b128 v[{44+8*q}:{47+8*q}], v7 offset:{ZF + 64*q + 16}")
    k.e("s_lshl_b32 s10, s8, 11")
    k.e("s_lshl_b32 s11, s9, 8")
    k.e("s_add_u32 s10, s10, s11")
    k.e("v_lshl_add_u32 v8, v1, 6, v3")
    k.e("v_add_u32 v9, s10, v8")
    k.e("v_lshlrev_b32 v9, 6, v9")
    k.e("v_lshl_add_u32 v9, v4, 4, v9")
    k.e("v_add_u32 v10, s11, v8")
    k.e("v_lshlrev_b32 v10, 11, v10")
    k.e("s_lshl_b32 s12, s8, 6")
    k.e("v_add_u32 v10, s12, v10")
    k.e("v_lshl_add_u32 v10, v4, 3, v10")
    k.e("v_lshlrev_b32 v11, 2, v2")
    k.e("v_xor_b32 v11, 128, v11")
    for blk in range(2):
        k.e(f"global_load_dwordx4 v[{64+8*blk}:{67+8*blk}], v9, s[4:5] offset:{2048*blk}")
        k.e(f"global_load_dwordx4 v[{68+8*blk}:{71+8*blk}], v9, s[4:5] offset:{2048*blk+32}")
    k.e("s_waitcnt vmcnt(0) lgkmcnt(0)")
    for blk in range(2):
        k.e(f"v_mfma_f32_32x32x16_bf16 v[16:31], v[32:35], v[{64+8*blk}:{67+8*blk}], 0")
        k.e(f"v_mfma_f32_32x32x16_bf16 v[16:31], v[36:39], v[{68+8*blk}:{71+8*blk}], v[16:31]")
        k.e("v_mov_b32 v12, 0")
        for q in range(2):
            for d in range(4):
                R = 64 + 8 * blk + 4 * q + d
                Z = 40 + 8 * q + 2 * d
                k.e(f"v_lshlrev_b32 v13, 16, v{R}")
                k.e(f"v_and_b32 v14, 0xffff0000, v{R}")
                k.e(f"v_fmac_f32 v12, v13, v{Z}")
                k.e(f"v_fmac_f32 v12, v14, v{Z+1}")
        k.e("ds_bpermute_b32 v13, v11, v12")
        k.e("s_waitcnt lgkmcnt(0)")
        k.e("v_add_f32 v12, v12, v13")
        k.e("v_add_f32 v12, 0x358637bd, v12")
        k.e("v_rcp_f32 v12, v12")
        k.e("s_nop 7")
        for r in range(16, 32):
            k.e(f"v_mul_f32 v{r}, v{r}, v12")
        for q in range(8):
            k.e(f"v_cvt_pk_bf16_f32 v{80+q}, v{16+2*q}, v{17+2*q}")
        for g in range(4):
            k.e(f"global_store_dwordx2 v10, v[{80+2*g}:{81+2*g}], s[18:19] offset:{16*g}")
        if blk == 0:
            k.e(f"v_add_u32 v10, {32*2048}, v10")
        k.e("s_nop 7")
    end(k)
    return k
```

```python
import sys

S, D, H, DH = 2048, 1024, 32, 32
WS_X, WS_ST, WS_Q, WS_K, WS_V, WS_O = 0, 4 << 20, 8 << 20, 12 << 20, 16 << 20, 20 << 20
KA = dict(A_x=0, A_wqkv=8, A_wo=16, B_x=24, B_wqkv=32, B_wo=40, out=48, dbg=56, ws=64)

class K:
    def __init__(self, name, grid, lds=0, block=256):
        self.name, self.grid, self.lds, self.block = name, grid, lds, block
        self.L = []
    def e(self, s): self.L.append("    " + s)
    def lab(self, s): self.L.append(s + ":")
    def text(self):
        n = self.name + "_kernel"
        head = [f".globl {n}", ".p2align 8", f".type {n},@function", f"{n}:"]
        return "\n".join(head + self.L + ["    s_endpgm"]) + "\n"
    def desc(self):
        n = self.name + "_kernel"
        return f""".section .rodata,"a"
.p2align 6
.amdhsa_kernel {n}
  .amdhsa_next_free_vgpr 256
  .amdhsa_next_free_sgpr 102
  .amdhsa_accum_offset 256
  .amdhsa_group_segment_fixed_size 0
  .amdhsa_kernarg_size 72
  .amdhsa_user_sgpr_count 2
  .amdhsa_user_sgpr_kernarg_segment_ptr 1
  .amdhsa_system_sgpr_workgroup_id_x 1
.end_amdhsa_kernel
"""

def load_ptr(k, sreg, src):
    if isinstance(src, tuple):
        k.e(f"s_load_dwordx2 s[{sreg}:{sreg+1}], s[0:1], {KA['ws']}")
        k.e("s_waitcnt lgkmcnt(0)")
        k.e(f"s_add_u32 s{sreg}, s{sreg}, {src[1]}")
        k.e(f"s_addc_u32 s{sreg+1}, s{sreg+1}, 0")
    else:
        k.e(f"s_load_dwordx2 s[{sreg}:{sreg+1}], s[0:1], {KA[src]}")
        k.e("s_waitcnt lgkmcnt(0)")

def guard(k, nwg):
    k.e(f"s_cmp_ge_u32 s2, {nwg}")
    k.e(f"s_cbranch_scc1 L_{k.name}_end")

def end(k):
    k.lab(f"L_{k.name}_end")

def gen_prep():
    k = K("prep", 256)
    guard(k, 256)
    load_ptr(k, 4, "A_x")
    load_ptr(k, 6, ("ws", WS_ST))
    k.e("s_lshl_b32 s3, s2, 8")
    k.e("v_add_u32 v1, s3, v0")
    k.e("v_lshlrev_b32 v2, 6, v1")
    for i in range(4):
        k.e(f"global_load_dwordx4 v[{8+4*i}:{11+4*i}], v2, s[4:5] offset:{16*i}")
    k.e("v_mov_b32 v4, 0")
    k.e("v_mov_b32 v5, 0")
    k.e("s_waitcnt vmcnt(0)")
    for r in range(8, 24):
        k.e(f"v_lshlrev_b32 v6, 16, v{r}")
        k.e(f"v_and_b32 v7, 0xffff0000, v{r}")
        k.e("v_add_f32 v4, v4, v6")
        k.e("v_fmac_f32 v5, v6, v6")
        k.e("v_add_f32 v4, v4, v7")
        k.e("v_fmac_f32 v5, v7, v7")
    k.e("v_lshlrev_b32 v3, 3, v1")
    k.e("global_store_dwordx2 v3, v[4:5], s[6:7]")
    end(k)
    return k

XST = 144
XT = 128 * XST

def gen_gemm(name, mode, asrc, wsrc, xres=None, xdst=None):
    qkv = mode != "wo"
    NG = 3 if qkv else 1
    WROW = 6144 if qkv else 2048
    GSTR = 2048
    WST = NG * 128 + 64
    BUF = XT + 64 * WST
    STAT_OFF = 2 * BUF
    k = K(name, 256, lds=2 * BUF + 1024 + 64)
    guard(k, 256)
    load_ptr(k, 4, asrc)
    load_ptr(k, 6, wsrc)
    k.e("s_lshr_b32 s8, s2, 4")
    k.e("s_and_b32 s9, s2, 15")
    k.e("v_lshrrev_b32 v1, 3, v0")
    k.e("v_and_b32 v2, 7, v0")
    k.e("s_lshl_b32 s10, s8, 7")
    k.e("v_add_u32 v3, s10, v1")
    k.e("v_lshlrev_b32 v3, 11, v3")
    k.e("v_lshl_add_u32 v3, v2, 4, v3")
    for i in range(4):
        k.e(f"v_add_u32 v{4+i}, {65536*i}, v3")
    k.e(f"s_mov_b32 s11, {WROW}")
    k.e("v_mul_lo_u32 v3, v1, s11")
    k.e("v_lshl_add_u32 v3, v2, 4, v3")
    k.e("s_lshl_b32 s12, s9, 7")
    k.e("v_add_u32 v3, s12, v3")
    for j in range(2):
        for g in range(NG):
            k.e(f"v_add_u32 v{8+j*NG+g}, {j*32*WROW + g*GSTR}, v3")
    k.e(f"v_mul_u32_u24 v14, {XST}, v1")
    k.e("v_lshl_add_u32 v14, v2, 4, v14")
    k.e(f"v_mul_u32_u24 v15, {WST}, v1")
    k.e("v_lshl_add_u32 v15, v2, 4, v15")
    k.e(f"v_add_u32 v15, {XT}, v15")
    k.e("v_and_b32 v16, 63, v0")
    k.e("v_lshrrev_b32 v17, 6, v0")
    k.e("v_lshrrev_b32 v18, 1, v17")
    k.e("v_and_b32 v19, 1, v17")
    k.e("v_and_b32 v20, 31, v16")
    k.e("v_lshrrev_b32 v21, 5, v16")
    k.e("v_lshl_add_u32 v22, v18, 6, v20")
    k.e(f"v_mul_u32_u24 v22, {XST}, v22")
    k.e("v_lshl_add_u32 v22, v21, 4, v22")
    k.e("v_bfe_u32 v23, v16, 2, 2")
    k.e("v_lshl_add_u32 v23, v21, 3, v23")
    k.e(f"v_mul_u32_u24 v23, {WST}, v23")
    k.e("v_bfe_u32 v24, v16, 4, 1")
    k.e("v_lshlrev_b32 v24, 5, v24")
    k.e("v_lshl_add_u32 v24, v19, 6, v24")
    k.e("v_and_b32 v25, 3, v16")
    k.e("v_lshl_add_u32 v24, v25, 3, v24")
    k.e("v_add_u32 v23, v23, v24")
    k.e(f"v_add_u32 v23, {XT}, v23")
    k.e(f"v_add_u32 v24, {BUF}, v22")
    k.e(f"v_add_u32 v25, {BUF}, v23")
    XR = (22, 24); WR = (23, 25)
    if qkv:
        load_ptr(k, 14, ("ws", WS_ST))
        k.e("v_lshrrev_b32 v26, 1, v0")
        k.e("v_and_b32 v27, 1, v0")
        k.e("v_add_u32 v28, s10, v26")
        k.e("v_lshlrev_b32 v28, 8, v28")
        k.e("v_lshl_add_u32 v28, v27, 7, v28")
        for i in range(8):
            k.e(f"global_load_dwordx4 v[{40+4*i}:{43+4*i}], v28, s[14:15] offset:{16*i}")
        k.e("v_mov_b32 v34, 0")
        k.e("v_mov_b32 v35, 0")
        k.e("s_waitcnt vmcnt(0)")
        for i in range(16):
            k.e(f"v_add_f32 v34, v34, v{40+2*i}")
            k.e(f"v_add_f32 v35, v35, v{41+2*i}")
        k.e("s_nop 1")
        k.e("v_mov_b32_dpp v31, v34 quad_perm:[1,0,3,2] row_mask:0xf bank_mask:0xf")
        k.e("v_mov_b32_dpp v32, v35 quad_perm:[1,0,3,2] row_mask:0xf bank_mask:0xf")
        k.e("v_add_f32 v34, v34, v31")
        k.e("v_add_f32 v35, v35, v32")
        k.e("v_mul_f32 v34, 0x3a800000, v34")
        k.e("v_mul_f32 v35, 0x3a800000, v35")
        k.e("v_fma_f32 v35, -v34, v34, v35")
        k.e("v_max_f32 v35, 0, v35")
        k.e("v_add_f32 v35, 0x3727c5ac, v35")
        k.e("v_rsq_f32 v35, v35")
        k.e("s_nop 0")
        k.e("v_mul_f32 v34, v34, v35")
        k.e("v_sub_f32 v34, 0, v34")
        k.e("v_lshlrev_b32 v31, 3, v26")
        k.e(f"v_add_u32 v31, {STAT_OFF}, v31")
        k.e(f"ds_write_b64 v31, v[34:35]")
        k.e("s_waitcnt lgkmcnt(0)")
        k.e("s_barrier")
        k.e("v_lshlrev_b32 v31, 3, v1")
        k.e(f"v_add_u32 v31, {STAT_OFF}, v31")
        for i in range(4):
            k.e(f"ds_read_b64 v[{26+2*i}:{27+2*i}], v31 offset:{256*i}")
        k.e("s_waitcnt lgkmcnt(0)")
    ACC = 160
    NB = 2 * NG
    for r in range(ACC, ACC + 16 * NB):
        k.e(f"v_mov_b32 v{r}, 0")
    STG = 40
    NW = 2 * NG
    def issue_loads():
        for i in range(4):
            k.e(f"global_load_dwordx4 v[{STG+4*i}:{STG+4*i+3}], v{4+i}, s[4:5]")
        for j in range(NW):
            k.e(f"global_load_dwordx4 v[{STG+16+4*j}:{STG+16+4*j+3}], v{8+j}, s[6:7]")
        k.e("s_add_u32 s4, s4, 128")
        k.e("s_addc_u32 s5, s5, 0")
        k.e(f"s_add_u32 s6, s6, {64*WROW}")
        k.e("s_addc_u32 s7, s7, 0")
    def norm_chunk(i):
        if not qkv: return
        c, r = 26 + 2 * i, 27 + 2 * i
        for d in range(4):
            R = STG + 4 * i + d
            k.e(f"v_lshlrev_b32 v80, 16, v{R}")
            k.e(f"v_and_b32 v81, 0xffff0000, v{R}")
            k.e(f"v_fma_f32 v80, v80, v{r}, v{c}")
            k.e(f"v_fma_f32 v81, v81, v{r}, v{c}")
            k.e(f"v_cvt_pk_bf16_f32 v{R}, v80, v81")
    def write_lds(buf, part):
        off = buf * BUF
        if part < 4:
            i = part
            norm_chunk(i)
            k.e(f"ds_write_b128 v14, v[{STG+4*i}:{STG+4*i+3}] offset:{off + 32*XST*i}")
        else:
            for j in range(2):
                for g in range(NG):
                    q = j * NG + g
                    k.e(f"ds_write_b128 v15, v[{STG+16+4*q}:{STG+16+4*q+3}] offset:{off + 32*WST*j + 128*g}")
    FA, FW = 84, 100
    def read_frags(buf, ks, st):
        for mb in range(2):
            r = FA + st * 8 + mb * 4
            k.e(f"ds_read_b128 v[{r}:{r+3}], v{XR[buf]} offset:{32*XST*mb + 32*ks}")
        for g in range(NG):
            for hh in range(2):
                r = FW + st * 12 + g * 4 + hh * 2
                k.e(f"ds_read_b64_tr_b16 v[{r}:{r+1}], v{WR[buf]} offset:{(16*ks + 4*hh)*WST + 128*g}")
    def swapped(g):
        if mode == "wo": return True
        if mode == "qkvA": return g == 0
        return g < 2
    def mfmas(st):
        for mb in range(2):
            for g in range(NG):
                a = FA + st * 8 + mb * 4
                w = FW + st * 12 + g * 4
                c = ACC + 16 * (mb * NG + g)
                if swapped(g):
                    k.e(f"v_mfma_f32_32x32x16_bf16 v[{c}:{c+15}], v[{w}:{w+3}], v[{a}:{a+3}], v[{c}:{c+15}]")
                else:
                    k.e(f"v_mfma_f32_32x32x16_bf16 v[{c}:{c+15}], v[{a}:{a+3}], v[{w}:{w+3}], v[{c}:{c+15}]")
    nrd = 2 + 2 * NG
    issue_loads()
    k.e("s_waitcnt vmcnt(0)")
    for p in range(5): write_lds(0, p)
    k.e("s_waitcnt lgkmcnt(0)")
    issue_loads()
    k.e("s_mov_b32 s20, 0")
    k.lab(f"L_{name}_loop")
    for half in range(2):
        buf = half
        k.e("s_barrier")
        read_frags(buf, 0, 0)
        for ks in range(4):
            st = ks & 1
            if ks < 3:
                read_frags(buf, ks + 1, st ^ 1)
                k.e(f"s_waitcnt lgkmcnt({nrd})")
            else:
                k.e("s_waitcnt lgkmcnt(0)")
            mfmas(st)
            if ks == 0:
                k.e("s_waitcnt vmcnt(0)")
                write_lds(buf ^ 1, 0); write_lds(buf ^ 1, 1)
            elif ks == 1:
                write_lds(buf ^ 1, 2); write_lds(buf ^ 1, 3)
            elif ks == 2:
                write_lds(buf ^ 1, 4)
        k.e("s_waitcnt lgkmcnt(0)")
        k.e("s_cmp_lt_u32 s20, 14")
        k.e(f"s_cbranch_scc0 L_{name}_skip{half}")
        issue_loads()
        k.lab(f"L_{name}_skip{half}")
    k.e("s_add_u32 s20, s20, 2")
    k.e("s_cmp_lt_u32 s20, 16")
    k.e(f"s_cbranch_scc1 L_{name}_loop")
    k.e("s_waitcnt vmcnt(0)")
    k.e("s_nop 15")
    k.e("s_nop 7")
    if qkv:
        epi_qkv(k, mode, ACC, swapped)
    else:
        epi_wo(k, ACC, xres, xdst)
    end(k)
    return k

def epi_qkv(k, mode, ACC, swapped):
    load_ptr(k, 14, ("ws", 0))
    k.e("s_lshl_b32 s12, s9, 1")
    k.e("v_add_u32 v26, s12, v19")
    k.e("v_lshl_add_u32 v27, v18, 6, s10")
    k.e("v_lshlrev_b32 v28, 11, v26")
    k.e("v_add_u32 v28, v28, v27")
    k.e("v_add_u32 v28, v28, v20")
    k.e("v_lshlrev_b32 v28, 6, v28")
    k.e("v_lshl_add_u32 v28, v21, 3, v28")
    k.e("v_lshl_add_u32 v29, v26, 5, v20")
    k.e("v_lshlrev_b32 v29, 11, v29")
    k.e("v_add_u32 v29, v29, v27")
    k.e("v_lshl_add_u32 v29, v21, 2, v29")
    k.e("v_lshlrev_b32 v29, 1, v29")
    base = {0: WS_Q, 1: WS_K, 2: WS_V}
    for mb in range(2):
        for g in range(3):
            c = ACC + 16 * (mb * 3 + g)
            if mode == "qkvA" and g < 2:
                for r in range(16):
                    R = c + r
                    k.e(f"v_mul_f32 v30, 0x3fb8aa3b, v{R}")
                    k.e("v_exp_f32 v30, v30")
                    k.e(f"v_add_f32 v31, 1.0, v{R}")
                    k.e(f"v_cmp_lt_f32 vcc, 0, v{R}")
                    k.e("s_nop 1")
                    k.e("v_cndmask_b32 v30, v30, v31, vcc")
                    k.e(f"v_add_f32 v{R}, 0x358637bd, v30")
            for q in range(8):
                k.e(f"v_cvt_pk_bf16_f32 v{32+q}, v{c+2*q}, v{c+2*q+1}")
            if swapped(g):
                k.e(f"v_add_u32 v30, {base[g] + 32*64*mb}, v28")
            else:
                k.e(f"v_add_u32 v30, {base[g] + 64*mb}, v29")
            for gg in range(4):
                k.e(f"global_store_dwordx2 v30, v[{32+2*gg}:{33+2*gg}], s[14:15] offset:{16*gg}")
            k.e("s_nop 1")

def epi_wo(k, ACC, xres, xdst):
    load_ptr(k, 14, xres)
    load_ptr(k, 16, xdst)
    load_ptr(k, 18, ("ws", WS_ST))
    k.e("v_lshl_add_u32 v27, v18, 6, s10")
    k.e("v_add_u32 v27, v27, v20")
    k.e("s_lshl_b32 s12, s9, 6")
    k.e("v_lshl_add_u32 v28, v19, 5, s12")
    k.e("v_lshl_add_u32 v28, v21, 2, v28")
    k.e("v_lshlrev_b32 v29, 10, v27")
    k.e("v_add_u32 v29, v29, v28")
    k.e("v_lshlrev_b32 v29, 1, v29")
    k.e("s_lshl_b32 s13, s9, 1")
    k.e("v_lshl_add_u32 v30, v27, 5, s13")
    k.e("v_add_u32 v30, v30, v19")
    k.e("v_lshlrev_b32 v30, 3, v30")
    k.e("v_lshlrev_b32 v31, 2, v16")
    k.e("v_xor_b32 v31, 128, v31")
    for mb in range(2):
        c = ACC + 16 * mb
        for gg in range(4):
            k.e(f"global_load_dwordx2 v[{40+2*gg}:{41+2*gg}], v29, s[14:15] offset:{16*gg}")
        k.e("v_mov_b32 v50, 0")
        k.e("v_mov_b32 v51, 0")
        k.e("s_waitcnt vmcnt(0)")
        for gg in range(4):
            for p in range(2):
                R = 40 + 2 * gg + p
                a0, a1 = c + 4 * gg + 2 * p, c + 4 * gg + 2 * p + 1
                k.e(f"v_lshlrev_b32 v52, 16, v{R}")
                k.e(f"v_and_b32 v53, 0xffff0000, v{R}")
                k.e(f"v_add_f32 v52, v52, v{a0}")
                k.e(f"v_add_f32 v53, v53, v{a1}")
                k.e(f"v_cvt_pk_bf16_f32 v{R}, v52, v53")
                k.e(f"v_lshlrev_b32 v52, 16, v{R}")
                k.e(f"v_and_b32 v53, 0xffff0000, v{R}")
                k.e("v_add_f32 v50, v50, v52")
                k.e("v_fmac_f32 v51, v52, v52")
                k.e("v_add_f32 v50, v50, v53")
                k.e("v_fmac_f32 v51, v53, v53")
        for gg in range(4):
            k.e(f"global_store_dwordx2 v29, v[{40+2*gg}:{41+2*gg}], s[16:17] offset:{16*gg}")
        k.e("ds_bpermute_b32 v52, v31, v50")
        k.e("ds_bpermute_b32 v53, v31, v51")
        k.e("s_waitcnt lgkmcnt(0)")
        k.e("v_add_f32 v50, v50, v52")
        k.e("v_add_f32 v51, v51, v53")
        k.e("v_cmp_gt_u32 vcc, 32, v16")
        k.e("s_and_saveexec_b64 s[22:23], vcc")
        k.e("global_store_dwordx2 v30, v[50:51], s[18:19]")
        k.e("s_mov_b64 exec, s[22:23]")
        if mb == 0:
            k.e(f"v_add_u32 v29, {32*2048}, v29")
            k.e(f"v_add_u32 v30, {32*256}, v30")
        k.e("s_nop 1")

def build(kernels, launches):
    hdr = open("interleave_layers__linear_attn_block__sliding_block__prompt.s.ref").read()
    top = []
    for line in hdr.splitlines():
        if line.startswith("; @launch"): break
        if "Override launch geometry" in line or "grid=ceil(out_elems" in line: continue
        top.append(line)
    out = top + [f"; @launch kernel={kk.name}_kernel grid=({kk.grid},1,1) block=({kk.block},1,1) lds={kk.lds}" for kk in launches]
    out.append('.amdgcn_target "amdgcn-amd-amdhsa--gfx950"')
    out.append(".text")
    body = "\n".join(out) + "\n" + "".join(kk.text() for kk in kernels)
    body += "".join(kk.desc() for kk in kernels)
    return body

if __name__ == "__main__":
    from gen_attn import gen_attn_a, gen_attn_b
    ks = []
    ks.append(gen_prep())
    X = ("ws", WS_X)
    ks.append(gen_gemm("qkv0", "qkvA", "A_x", "A_wqkv"))
    ks.append(gen_attn_a("atta0"))
    ks.append(gen_gemm("wo0", "wo", ("ws", WS_O), "A_wo", "A_x", X))
    ks.append(gen_gemm("qkv1", "qkvB", X, "B_wqkv"))
    ks.append(gen_attn_b("attb1"))
    ks.append(gen_gemm("wo1", "wo", ("ws", WS_O), "B_wo", X, X))
    ks.append(gen_gemm("qkv2", "qkvA", X, "A_wqkv"))
    ks.append(gen_gemm("wo2", "wo", ("ws", WS_O), "A_wo", X, X))
    ks.append(gen_gemm("qkv3", "qkvB", X, "B_wqkv"))
    ks.append(gen_gemm("wo3", "wo", ("ws", WS_O), "B_wo", X, "out"))
    by = {kk.name: kk for kk in ks}
    order = ["prep", "qkv0", "atta0", "wo0", "qkv1", "attb1", "wo1", "qkv2", "atta0", "wo2", "qkv3", "attb1", "wo3"]
    txt = build(ks, [by[n] for n in order])
    open("interleave_layers__linear_attn_block__sliding_block__prompt.s", "w").write(txt)
    print("written", len(txt))
```
